```python
import torch

def _softmax(x, axis=-1):
    return torch.softmax(x, dim=axis)

def _gelu(x):
    return torch.nn.functional.gelu(x, approximate='tanh')

def _silu(x):
    return torch.nn.functional.silu(x)

def _sigmoid(x):
    return torch.sigmoid(x)

def _layernorm(x, axis=-1, eps=1e-05):
    m = x.mean(dim=axis, keepdim=True)
    v = x.var(dim=axis, keepdim=True, unbiased=False)
    return (x - m) / torch.sqrt(v + eps)

def _scatter_add(tgt, idx, src, axis=0):
    return tgt.clone().index_add_(axis, idx, src)

def _segment_sum(src, seg, n):
    out = torch.zeros((n,) + src.shape[1:], dtype=src.dtype)
    return out.index_add_(0, seg, src)

def _pad(x, pw):
    flat = tuple((v for pair in reversed(pw) for v in pair))
    return torch.nn.functional.pad(x, flat)
kernel_name = 'adaLN_cond__softmax_full_mha__mixer_gmlp__prompt'

def setup_inputs():

    _w = lambda a: (lambda t: t.to(torch.bfloat16) if t.is_floating_point() else t)(torch.as_tensor(a))

    def _A_setup():
        B, S, D = (1, 2048, 512)
        return {'x': _w((lambda *s: torch.randn(*s, dtype=torch.bfloat16) * 0.05)(B, S, D)), 'wqkv': _w((lambda *s: torch.randn(*s, dtype=torch.bfloat16) * 0.05)(D, 3 * D)), 'wo': _w((lambda *s: torch.randn(*s, dtype=torch.bfloat16) * 0.05)(D, D))}
    _A_in = _A_setup()

    def _B_setup():
        B, S, D, F = (1, 2048, 512, 1792)
        Fh = F // 2
        return {'x': _w((lambda *s: torch.randn(*s, dtype=torch.bfloat16) * 0.05)(B, S, D)), 'w_in': _w((lambda *s: torch.randn(*s, dtype=torch.bfloat16) * 0.4)(D, 2 * Fh)), 'w_sp': _w(0.01 * (lambda *s: torch.randn(*s, dtype=torch.bfloat16) * 0.4)(S, S)), 'b_sp': _w(1.0 + 0.01 * (lambda *s: torch.randn(*s, dtype=torch.bfloat16) * 0.05)(S)), 'w_out': _w((lambda *s: torch.randn(*s, dtype=torch.bfloat16) * 0.05)(Fh, D))}
    _B_in = _B_setup()
    return {'A_x': _A_in['x'], 'A_wqkv': _A_in['wqkv'], 'A_wo': _A_in['wo'], 'B_x': _B_in['x'], 'B_w_in': _B_in['w_in'], 'B_w_sp': _B_in['w_sp'], 'B_b_sp': _B_in['b_sp'], 'B_w_out': _B_in['w_out'], 'c': _w((lambda *s: torch.randn(*s, dtype=torch.bfloat16) * 0.1)(1, 512) * 8.0), 'w_mod': _w((lambda *s: torch.randn(*s, dtype=torch.bfloat16) * 0.1)(512, 6 * 512) * 512 ** (-0.5) * 8.0)}

def reference(A_x, A_wqkv, A_wo, B_x, B_w_in, B_w_sp, B_b_sp, B_w_out, c, w_mod):

    def _A_ref(x, wqkv, wo):
        B, S, D = x.shape
        H = 32
        Dh = D // H
        qkv = (lambda x, *d: x.permute(*d))((x @ wqkv).reshape(B, S, 3, H, Dh), 2, 0, 3, 1, 4)
        q, k, v = (qkv[0], qkv[1], qkv[2])
        scale = Dh ** (-0.5)
        scores = torch.einsum('bhqd,bhkd->bhqk', q, k) * scale
        p = _softmax(scores, axis=-1)
        o = torch.einsum('bhqk,bhkd->bhqd', p, v)
        return (lambda x, *d: x.permute(*d))(o, 0, 2, 1, 3).reshape(B, S, D) @ wo

    def _B_ref(x, w_in, w_sp, b_sp, w_out):
        B, S, D = x.shape
        F = w_in.shape[-1]
        Fh = F // 2
        z = _gelu(torch.einsum('bsd,df->bsf', x, w_in))
        z1 = z[..., :Fh].clone()
        z2 = _layernorm(z[..., Fh:], axis=-1)
        g = torch.einsum('ts,bsf->btf', w_sp, z2) + b_sp[None, :, None]
        return torch.einsum('bsf,fd->bsd', z1 * g, w_out)
    x = A_x
    mod = (_silu(c) @ w_mod).reshape(c.shape[0], 6, 1, -1)
    sa, ca, ga, sb, cb, gb = (mod[:, 0].clone(), mod[:, 1].clone(), mod[:, 2].clone(), mod[:, 3].clone(), mod[:, 4].clone(), mod[:, 5].clone())
    h = _layernorm(x, axis=-1) * (1 + ca) + sa
    x = x + ga * _A_ref(h, A_wqkv, A_wo)
    h = _layernorm(x, axis=-1) * (1 + cb) + sb
    x = x + gb * _B_ref(h, B_w_in, B_w_sp, B_b_sp, B_w_out)
    return x
```

```python
import sys, os

NAME = "adaLN_cond__softmax_full_mha__mixer_gmlp__prompt"

WS_CNT = 0x0
WS_PROF = 0x20000
WS_MODV = 0x10000
WS_QF = 0x100000
WS_KV = 0x300000
WS_OF = 0x700000
WS_X1F = 0x900000
WS_Z1F = 0xB00000
WS_Z2N = 0xF00000
WS_YF = 0x1300000
WS_ZST = 0x1700000
WS_BYTES = 268435456

C1 = 0
C2 = 8
C3 = 16
CZ = 48
C4 = 80
C5 = 96
NCNT = 128

P_X, P_WQKV, P_WO, P_BX, P_WIN, P_WSP, P_BSP, P_WOUT, P_C, P_WMOD, P_OUT, P_DBG, P_WS = [16 + 2 * i for i in range(13)]

S_WG = 2
S_WAVE = 3


def sp(p):
    return f"s[{p}:{p+1}]"


def vr(a, n=1):
    return f"v{a}" if n == 1 else f"v[{a}:{a+n-1}]"


def sr(a, n=1):
    return f"s{a}" if n == 1 else f"s[{a}:{a+n-1}]"


class Asm:
    def __init__(self):
        self.lines = []
        self.uid = 0

    def e(self, s):
        self.lines.append("    " + s)

    def c(self, s):
        self.lines.append("    ; " + s)

    def label(self, l):
        self.lines.append(l + ":")

    def newlabel(self, base):
        self.uid += 1
        return f"L_{base}_{self.uid}"

    def raw(self, s):
        self.lines.append(s)

    def nop(self, n):
        while n > 0:
            k = min(n, 16)
            self.e(f"s_nop {k-1}")
            n -= k

    def srd(self, d, base, size, off=None):
        if off is None:
            self.e(f"s_mov_b32 s{d}, s{base}")
            self.e(f"s_mov_b32 s{d+1}, s{base+1}")
        else:
            self.e(f"s_add_u32 s{d}, s{base}, {off}")
            self.e(f"s_addc_u32 s{d+1}, s{base+1}, 0")
        self.e(f"s_mov_b32 s{d+2}, {size}")
        self.e(f"s_mov_b32 s{d+3}, 0x20000")


class Gen:
    def __init__(self, stop_after=99, prof=False, opts=None):
        self.a = Asm()
        self.stop_after = stop_after
        self.prof = prof
        self.o = opts or {}
        self.nstamp = 0

    def stamp(self):
        if not self.prof:
            return
        i = self.nstamp
        self.nstamp += 1
        self.a.e(f"{self.o.get('clk','s_memrealtime')} s[100:101]")
        self.a.e("s_waitcnt lgkmcnt(0)")
        self.a.e(f"s_mov_b32 s{64+i}, s100")

    def flush_stamps(self):
        if not self.prof:
            return
        a = self.a
        a.e("s_waitcnt lgkmcnt(0)")
        l = a.newlabel("stamp")
        a.e(f"s_lshl_b32 s4, s{S_WG}, 3")
        a.e(f"s_add_u32 s4, s4, s{S_WAVE}")
        a.e("s_lshl_b32 s4, s4, 7")
        a.e(f"s_add_u32 s4, s4, {WS_PROF}")
        a.e("v_mov_b32 v4, s4")
        a.e("s_mov_b64 exec, 1")
        for i in range(self.nstamp):
            a.e(f"v_mov_b32 v5, s{64+i}")
            a.e(f"global_store_dword v4, v5, {sp(P_WS)} offset:{4*i}")
        a.e("s_mov_b64 exec, -1")
        a.label(l)

    def signal(self, off_sgpr, vtmp=4):
        a = self.a
        a.e("s_waitcnt vmcnt(0) lgkmcnt(0)")
        a.e("s_barrier")
        l = a.newlabel("sig")
        a.e(f"s_cmp_lg_u32 s{S_WAVE}, 0")
        a.e(f"s_cbranch_scc1 {l}")
        a.e(f"v_mov_b32 v{vtmp}, s{off_sgpr}")
        a.e(f"v_mov_b32 v{vtmp+1}, 1")
        a.e("s_mov_b64 exec, 1")
        a.e(f"global_atomic_add v{vtmp}, v{vtmp+1}, {sp(P_WS)} sc1")
        a.e("s_mov_b64 exec, -1")
        a.label(l)

    def wait_cnt(self, off_sgpr, target, nlines=1, vtmp=4, stmp=60):
        a = self.a
        l = a.newlabel("wait")
        lp = a.newlabel("poll")
        a.e(f"s_cmp_lg_u32 s{S_WAVE}, 0")
        a.e(f"s_cbranch_scc1 {l}")
        a.e(f"v_lshlrev_b32 v{vtmp}, 8, v1")
        a.e(f"v_add_u32 v{vtmp}, s{off_sgpr}, v{vtmp}")
        a.e(f"s_mov_b64 exec, {(1 << nlines) - 1}")
        a.e(f"s_mov_b32 s{stmp}, 0x400000")
        a.label(lp)
        a.e(f"global_load_dword v{vtmp+1}, v{vtmp}, {sp(P_WS)} sc1")
        a.e(f"s_sub_u32 s{stmp}, s{stmp}, 1")
        a.e(f"s_cbranch_scc1 {lp}_out")
        a.e("s_waitcnt vmcnt(0)")
        a.e(f"v_cmp_gt_u32 vcc, {target}, v{vtmp+1}")
        a.e(f"s_cbranch_vccnz {lp}")
        a.label(lp + "_out")
        a.e("s_waitcnt vmcnt(0)")
        a.e("s_mov_b64 exec, -1")
        a.label(l)
        a.e("s_barrier")

    def finish_phase(self, n):
        if self.stop_after == n:
            self.a.e("s_branch L_end")
            return True
        return False

    def prologue(self):
        a = self.a
        a.e("s_load_dwordx16 s[16:31], s[0:1], 0")
        a.e("s_load_dwordx8 s[32:39], s[0:1], 64")
        a.e("s_load_dwordx2 s[40:41], s[0:1], 96")
        a.e(f"s_cmp_ge_u32 s{S_WG}, 256")
        a.e("s_cbranch_scc1 L_exit")
        self.stamp()
        a.e("v_and_b32 v1, 63, v0")
        a.e("v_lshrrev_b32 v4, 6, v0")
        a.e("v_and_b32 v2, 31, v1")
        a.e("v_readfirstlane_b32 s3, v4")
        a.e("v_lshrrev_b32 v3, 5, v1")
        a.e("s_getpc_b64 s[4:5]")
        a.label("L_pc")
        lpf = a.newlabel("nopf")
        a.e(f"s_cmp_lg_u32 s{S_WAVE}, 7")
        a.e(f"s_cbranch_scc1 {lpf}")
        a.e(f"s_lshr_b32 s6, s{S_WG}, 3")
        a.e("s_lshl_b32 s6, s6, 10")
        a.e("v_lshlrev_b32 v4, 4, v1")
        a.e("v_add_u32 v4, s6, v4")
        a.raw("@CODEPF@")
        a.label(lpf)
        a.e("s_waitcnt lgkmcnt(0)")

    def p01(self):
        a = self.a
        S_RB, S_HG = 42, 43
        a.e(f"s_lshr_b32 s{S_RB}, s{S_WG}, 3")
        a.e(f"s_and_b32 s{S_HG}, s{S_WG}, 7")
        lz = a.newlabel("nozero")
        a.e(f"s_cmp_lg_u32 s{S_WG}, 255")
        a.e(f"s_cbranch_scc1 {lz}")
        a.e(f"s_cmp_lg_u32 s{S_WAVE}, 7")
        a.e(f"s_cbranch_scc1 {lz}")
        a.e("v_lshlrev_b32 v4, 8, v1")
        a.e("v_mov_b32 v5, 0")
        for i in range(NCNT // 64):
            a.e(f"global_store_dword v4, v5, {sp(P_WS)} sc1")
            a.e("v_add_u32 v4, 0x4000, v4")
        a.e("s_waitcnt vmcnt(0)")
        a.e("v_mov_b32 v4, 4")
        a.e("v_mov_b32 v5, 1")
        a.e("s_mov_b64 exec, 1")
        a.e(f"global_store_dword v4, v5, {sp(P_DBG)} sc1")
        a.e("s_mov_b64 exec, -1")
        a.label(lz)

        VX = 8
        a.e("v_lshrrev_b32 v4, 4, v1")
        a.e("v_lshlrev_b32 v4, 10, v4")
        a.e("v_and_b32 v5, 15, v1")
        a.e("v_lshl_add_u32 v4, v5, 4, v4")
        a.srd(4, P_X, 2097152)
        a.e(f"s_lshl_b32 s44, s{S_RB}, 16")
        a.e(f"s_lshl_b32 s45, s{S_WAVE}, 13")
        a.e("s_add_u32 s44, s44, s45")
        a.e("s_add_u32 s45, s44, 4096")

        VWD = 184
        for i in range(3):
            a.e(f"v_add_u32 v5, {64*i}, v1")
            a.e("v_mul_u32_u24 v6, 2731, v5")
            a.e("v_lshrrev_b32 v6, 16, v6")
            a.e("v_mul_u32_u24 v7, 24, v6")
            a.e("v_sub_u32 v5, v5, v7")
            a.e("v_lshlrev_b32 v7, 1, v6")
            a.e("v_and_b32 v7, 4, v7")
            a.e("v_xor_b32 v5, v5, v7")
            a.e("v_lshrrev_b32 v7, 3, v5")
            a.e("v_lshlrev_b32 v7, 10, v7")
            a.e("v_and_b32 v5, 7, v5")
            a.e("v_lshl_add_u32 v5, v5, 4, v7")
            a.e("v_mul_u32_u24 v6, 3072, v6")
            a.e(f"v_add_u32 v{VWD+i}, v5, v6")
        a.e(f"s_lshl_b32 s46, s{S_HG}, 7")
        a.e(f"s_add_u32 s8, s{P_WQKV}, s46")
        a.e(f"s_addc_u32 s9, s{P_WQKV+1}, 0")
        a.e("s_sub_u32 s10, 1572864, s46")
        a.e("s_mov_b32 s11, 0x20000")
        a.e(f"s_mul_i32 s47, s{S_WAVE}, 24576")
        a.e(f"s_mul_i32 s48, s{S_WAVE}, 3072")
        RING = 65536
        a.e(f"s_add_u32 s48, s48, {RING}")

        def wdma(stage):
            slot = stage % 4
            a.e(f"s_add_u32 s49, s47, {stage*64*3072}")
            for i in range(3):
                a.e(f"s_add_u32 m0, s48, {slot*24576 + i*1024}")
                a.e("s_nop 0")
                a.e(f"buffer_load_dwordx4 v{VWD+i}, s[8:11], s49 offen lds")
        self.p1_wdma = wdma

        def xloads():
            for rg in range(2):
                for i in range(4):
                    a.e(f"buffer_load_dwordx4 {vr(VX+16*rg+4*i,4)}, v4, s[4:7], s{44+rg} offen offset:{256*i}")

        lmod = a.newlabel("modwg")
        lmerge = a.newlabel("merge")
        NMOD = 96
        a.e(f"s_cmp_lt_u32 s{S_WG}, {NMOD}")
        a.e(f"s_cbranch_scc1 {lmod}")
        xloads()
        for st in range(4):
            wdma(st)
        a.e("s_waitcnt vmcnt(12)")
        a.e(f"s_branch {lmerge}")
        a.label(lmod)
        VW, VC, VACC = 104, 136, 140
        a.e("v_lshrrev_b32 v5, 2, v0")
        a.e("v_and_b32 v6, 3, v0")
        a.e("v_lshlrev_b32 v7, 3, v5")
        a.e(f"global_load_dwordx2 {vr(VC,2)}, v7, {sp(P_C)}")
        a.e("v_mul_u32_u24 v5, 24576, v5")
        a.e("v_lshl_add_u32 v5, v6, 4, v5")
        a.srd(12, P_WMOD, 3145728)
        a.e(f"s_lshl_b32 s49, s{S_WG}, 6")
        for i in range(4):
            a.e(f"buffer_load_dwordx4 {vr(VW+4*i,4)}, v5, s[12:15], s49 offen")
            if i < 3:
                a.e("s_add_u32 s49, s49, 6144")
        a.e("s_waitcnt vmcnt(4)")
        if self.o.get('modprof'): self.stamp()
        VS = 150
        for k in range(2):
            a.e(f"v_lshlrev_b32 v{VS+2*k}, 16, v{VC+k}")
            a.e(f"v_and_b32 v{VS+2*k+1}, 0xffff0000, v{VC+k}")
        for k in range(4):
            a.e(f"v_mul_f32 v{160+k}, 0xbfb8aa3b, v{VS+k}")
        for k in range(4):
            a.e(f"v_exp_f32 v{160+k}, v{160+k}")
        a.e("s_nop 0")
        for k in range(4):
            a.e(f"v_add_f32 v{160+k}, 1.0, v{160+k}")
        for k in range(4):
            a.e(f"v_rcp_f32 v{160+k}, v{160+k}")
        a.e("s_nop 0")
        for k in range(4):
            a.e(f"v_mul_f32 v{VS+k}, v{VS+k}, v{160+k}")
        for k in range(2):
            a.e(f"v_cvt_pk_bf16_f32 v{160+k}, v{VS+2*k}, v{VS+2*k+1}")
        for k in range(2):
            a.e(f"v_lshlrev_b32 v{VS+2*k}, 16, v{160+k}")
            a.e(f"v_and_b32 v{VS+2*k+1}, 0xffff0000, v{160+k}")
        for j in range(8):
            a.e(f"v_mov_b32 v{VACC+j}, 0")
        a.e("s_waitcnt vmcnt(0)")
        if self.o.get('modprof'): self.stamp()
        xloads()
        for i in range(4):
            for k in range(4):
                a.e(f"v_lshlrev_b32 v160, 16, v{VW+4*i+k}")
                a.e(f"v_and_b32 v161, 0xffff0000, v{VW+4*i+k}")
                a.e(f"v_fmac_f32 v{VACC+2*k}, v{VS+i}, v160")
                a.e(f"v_fmac_f32 v{VACC+2*k+1}, v{VS+i}, v161")
        if self.o.get('modprof'): self.stamp()
        a.e("v_lshrrev_b32 v5, 2, v0")
        a.e("v_lshlrev_b32 v5, 7, v5")
        a.e("v_and_b32 v6, 3, v0")
        a.e("v_lshl_add_u32 v5, v6, 5, v5")
        a.e(f"ds_write_b128 v5, {vr(VACC,4)}")
        a.e(f"ds_write_b128 v5, {vr(VACC+4,4)} offset:16")
        a.e("s_waitcnt lgkmcnt(0)")
        a.e("s_barrier")
        a.e("v_lshrrev_b32 v6, 5, v0")
        a.e("v_lshlrev_b32 v5, 2, v2")
        a.e("v_lshl_add_u32 v6, v6, 10, v5")
        for i in range(8):
            a.e(f"ds_read_b32 v{160+i}, v6 offset:{128*i}")
        a.e("s_waitcnt lgkmcnt(0)")
        for i in range(1, 8):
            a.e(f"v_add_f32 v160, v160, v{160+i}")
        a.e("v_lshlrev_b32 v6, 2, v0")
        a.e("ds_write_b32 v6, v160 offset:16384")
        a.e("s_waitcnt lgkmcnt(0)")
        a.e("s_barrier")
        lm2 = a.newlabel("mod2")
        a.e(f"s_cmp_lg_u32 s{S_WAVE}, 0")
        a.e(f"s_cbranch_scc1 {lm2}")
        a.e("v_lshl_add_u32 v6, v3, 10, v5")
        for i in range(8):
            a.e(f"ds_read_b32 v{160+i}, v6 offset:{16384+128*i}")
        a.e("s_waitcnt lgkmcnt(0)")
        for i in range(1, 8):
            a.e(f"v_add_f32 v160, v160, v{160+i}")
        a.e("v_mov_b32 v161, v160")
        a.e("s_nop 1")
        a.e("v_permlane32_swap_b32 v160, v161")
        a.e("s_nop 1")
        a.e("v_add_f32 v160, v160, v161")
        a.e("v_cvt_pk_bf16_f32 v160, v160, v160")
        a.e("v_and_b32 v160, 0xffff0000, v160")
        a.e(f"s_lshr_b32 s49, s{S_WG}, 4")
        lm3 = a.newlabel("mod3")
        lm4 = a.newlabel("mod4")
        a.e("s_cmp_eq_u32 s49, 1")
        a.e(f"s_cbranch_scc1 {lm3}")
        a.e("s_cmp_lg_u32 s49, 4")
        a.e(f"s_cbranch_scc1 {lm4}")
        a.label(lm3)
        a.e("v_add_f32 v160, 1.0, v160")
        a.e("v_cvt_pk_bf16_f32 v160, v160, v160")
        a.e("v_and_b32 v160, 0xffff0000, v160")
        a.label(lm4)
        a.e(f"s_lshl_b32 s49, s{S_WG}, 7")
        a.e(f"s_add_u32 s49, s49, {WS_MODV}")
        a.e("v_add_u32 v5, s49, v5")
        if self.o.get('modprof'): self.stamp()
        a.e("s_mov_b64 exec, 0xffffffff")
        a.e(f"global_store_dword v5, v160, {sp(P_WS)} sc1")
        a.e("s_mov_b64 exec, -1")
        a.e("s_waitcnt vmcnt(0)")
        if self.o.get('modprof'): self.stamp()
        a.e(f"s_cmp_ge_u32 s{S_WG}, 32")
        a.e(f"s_cbranch_scc1 {lm2}")
        a.e("v_mov_b32 v5, 0")
        a.e("v_mov_b32 v6, 1")
        a.e("s_mov_b64 exec, 1")
        a.e(f"global_atomic_add v5, v6, {sp(P_DBG)} sc1")
        a.e("s_mov_b64 exec, -1")
        a.label(lm2)
        for st in range(4):
            wdma(st)
        a.e("s_waitcnt vmcnt(12)")
        a.label(lmerge)
        self.stamp()

        VN = 40
        a.e("v_mov_b32 v6, 0x3f803f80")
        for rg in range(2):
            a.e(f"v_mov_b32 v{170+rg}, 0")
            a.e(f"v_mov_b32 v{172+rg}, 0")
        for k in range(16):
            for rg in range(2):
                x = VX + 16 * rg + k
                a.e(f"v_dot2_f32_bf16 v{170+rg}, v{x}, v6, v{170+rg}")
                a.e(f"v_dot2_f32_bf16 v{172+rg}, v{x}, v{x}, v{172+rg}")
        for rot in (8, 4, 2, 1):
            a.e("s_nop 1")
            for r in range(4):
                a.e(f"v_add_f32_dpp v{170+r}, v{170+r}, v{170+r} row_ror:{rot} row_mask:0xf bank_mask:0xf")
        a.e("s_nop 0")
        self.ln_finish(170, 172, 174, 176, 2, 512)
        for rg in range(2):
            for k in range(16):
                x = VX + 16 * rg + k
                n = VN + 32 * rg + 2 * k
                a.e(f"v_lshlrev_b32 v{n}, 16, v{x}")
                a.e(f"v_and_b32 v{n+1}, 0xffff0000, v{x}")
            for k in range(32):
                n = VN + 32 * rg + k
                a.e(f"v_fma_f32 v{n}, v{n}, v{174+rg}, v{176+rg}")
        self.stamp()

        l = a.newlabel("mw")
        lp = a.newlabel("mpoll")
        a.e(f"s_cmp_lg_u32 s{S_WAVE}, 0")
        a.e(f"s_cbranch_scc1 {l}")
        a.e("v_mov_b32 v5, 0")
        a.e("s_mov_b64 exec, 1")
        a.e("s_mov_b32 s60, 0x400000")
        a.label(lp)
        a.e(f"global_load_dwordx2 v[6:7], v5, {sp(P_DBG)} sc1")
        a.e("s_sub_u32 s60, s60, 1")
        a.e(f"s_cbranch_scc1 {lp}_out")
        a.e("s_waitcnt vmcnt(0)")
        a.e("v_cmp_gt_u32 vcc, 32, v6")
        a.e("v_cmp_gt_u32 s[62:63], 1, v7")
        a.e("s_nop 1")
        a.e("s_or_b64 vcc, vcc, s[62:63]")
        a.e(f"s_cbranch_vccnz {lp}")
        a.label(lp + "_out")
        a.e("s_waitcnt vmcnt(0)")
        a.e("s_mov_b64 exec, -1")
        a.label(l)
        a.e("s_barrier")
        self.stamp()
        VC1, VSA = 104, 136
        a.e("v_and_b32 v5, 15, v1")
        a.e("v_lshlrev_b32 v5, 5, v5")
        a.e(f"v_add_u32 v5, {WS_MODV}, v5")
        for i in range(4):
            a.e(f"global_load_dwordx4 {vr(VC1+8*i,4)}, v5, {sp(P_WS)} offset:{2048+512*i} sc1")
            a.e(f"global_load_dwordx4 {vr(VC1+8*i+4,4)}, v5, {sp(P_WS)} offset:{2048+512*i+16} sc1")
            a.e(f"global_load_dwordx4 {vr(VSA+8*i,4)}, v5, {sp(P_WS)} offset:{512*i} sc1")
            a.e(f"global_load_dwordx4 {vr(VSA+8*i+4,4)}, v5, {sp(P_WS)} offset:{512*i+16} sc1")
        a.e("v_lshrrev_b32 v6, 4, v1")
        a.e(f"s_lshl_b32 s49, s{S_WAVE}, 3")
        a.e("v_add_u32 v6, s49, v6")
        for rg in range(2):
            a.e(f"v_add_u32 v7, {4*rg}, v6")
            a.e("v_and_b32 v168, 15, v7")
            a.e("v_and_b32 v169, 15, v1")
            a.e("v_xor_b32 v168, v168, v169")
            a.e("v_lshlrev_b32 v168, 4, v168")
            a.e(f"v_lshl_add_u32 v{178+rg}, v7, 10, v168")
        a.e("s_waitcnt vmcnt(0)")
        for rg in range(2):
            for k in range(32):
                n = VN + 32 * rg + k
                a.e(f"v_fma_f32 v{n}, v{n}, v{VC1+k}, v{VSA+k}")
            for k in range(16):
                n = VN + 32 * rg + 2 * k
                a.e(f"v_cvt_pk_bf16_f32 v{VX+16*rg+k}, v{n}, v{n+1}")
            for i in range(4):
                a.e(f"ds_write_b128 v{178+rg}, {vr(VX+16*rg+4*i,4)} offset:{256*i}")
        self.stamp()

        S_KG, S_TT, S_FG = 50, 51, 52
        a.e(f"s_lshr_b32 s{S_KG}, s{S_WAVE}, 2")
        a.e(f"s_and_b32 s{S_TT}, s{S_WAVE}, 1")
        a.e(f"s_bfe_u32 s{S_FG}, s{S_WAVE}, 0x10001")
        VTA = 170
        a.e("v_and_b32 v5, 15, v2")
        a.e("v_xor_b32 v5, v5, v3")
        a.e("v_lshlrev_b32 v5, 4, v5")
        a.e("v_lshl_add_u32 v5, v2, 10, v5")
        a.e(f"s_lshl_b32 s49, s{S_TT}, 15")
        a.e("v_add_u32 v5, s49, v5")
        a.e(f"s_lshl_b32 s49, s{S_KG}, 6")
        a.e("v_xor_b32 v5, s49, v5")
        a.e(f"v_mov_b32 v{VTA}, v5")
        a.e(f"v_xor_b32 v{VTA+1}, 32, v5")
        a.e(f"v_xor_b32 v{VTA+2}, 128, v5")
        a.e(f"v_xor_b32 v{VTA+3}, 160, v5")
        VWA = 174
        a.e("v_bfe_u32 v5, v1, 2, 2")
        a.e("v_lshl_add_u32 v5, v3, 3, v5")
        a.e("v_mul_u32_u24 v5, 384, v5")
        a.e("v_bfe_u32 v6, v1, 3, 1")
        a.e(f"v_xor_b32 v6, s{S_FG}, v6")
        a.e("v_lshl_add_u32 v5, v6, 6, v5")
        a.e("v_bfe_u32 v6, v1, 4, 1")
        a.e("v_lshl_add_u32 v5, v6, 5, v5")
        a.e("v_and_b32 v6, 3, v1")
        a.e("v_lshl_add_u32 v5, v6, 3, v5")
        a.e(f"s_mul_i32 s49, s{S_KG}, {32*384}")
        a.e(f"s_add_u32 s49, s49, {RING}")
        a.e(f"v_add_u32 v{VWA}, s49, v5")
        a.e(f"v_add_u32 v{VWA+1}, 49152, v{VWA}")
        ACC = 192
        for r in range(48):
            a.e(f"v_mov_b32 v{ACC+r}, 0")
        def rd_frags(st):
            base = 8 + 32 * (st & 1)
            slot = st % 4
            for u in range(2):
                a.e(f"ds_read_b128 {vr(base+4*u,4)}, v{VTA + 2*(st&1) + u} offset:{256*(st>>1)}")
                for t in range(3):
                    off = (slot % 2) * 24576 + (16 * u) * 384 + t * 128
                    w = base + 8 + 12 * u + 4 * t
                    a.e(f"ds_read_b64_tr_b16 {vr(w,2)}, v{VWA + slot//2} offset:{off}")
                    a.e(f"ds_read_b64_tr_b16 {vr(w+2,2)}, v{VWA + slot//2} offset:{off + 4*384}")
        a.e("s_waitcnt vmcnt(0) lgkmcnt(0)")
        a.e("s_barrier")
        rd_frags(0)
        for st in range(8):
            if st < 7:
                younger = min(7, st + 3) - (st + 1)
                a.e(f"s_waitcnt vmcnt({3*younger}) lgkmcnt(0)")
                a.e("s_barrier")
                if st + 4 <= 7:
                    wdma(st + 4)
                rd_frags(st + 1)
            else:
                a.e("s_waitcnt lgkmcnt(0)")
            base = 8 + 32 * (st & 1)
            for u in range(2):
                w = base + 8 + 12 * u
                t_ = vr(base + 4 * u, 4)
                a.e(f"v_mfma_f32_32x32x16_bf16 {vr(ACC,16)}, {vr(w,4)}, {t_}, {vr(ACC,16)}")
                a.e(f"v_mfma_f32_32x32x16_bf16 {vr(ACC+16,16)}, {vr(w+4,4)}, {t_}, {vr(ACC+16,16)}")
                a.e(f"v_mfma_f32_32x32x16_bf16 {vr(ACC+32,16)}, {t_}, {vr(w+8,4)}, {vr(ACC+32,16)}")
        self.stamp()
        self.ksplit_reduce(ACC, 3, S_KG, 0, tmp=8)
        a.e("s_mov_b32 s49, 0x3eb8aa3b")
        for r in range(8):
            a.e(f"v_mul_f32 v{ACC+r}, s49, v{ACC+r}")
        for t in range(3):
            for k in range(4):
                a.e(f"v_cvt_pk_bf16_f32 v{8+4*t+k}, v{ACC+16*t+2*k}, v{ACC+16*t+2*k+1}")
        a.e(f"s_lshl_b32 s53, s{S_HG}, 2")
        a.e(f"s_lshl_b32 s54, s{S_FG}, 1")
        a.e("s_add_u32 s53, s53, s54")
        a.e(f"s_lshl_b32 s54, s{S_RB}, 1")
        a.e(f"s_add_u32 s54, s54, s{S_TT}")
        a.e(f"s_add_u32 s55, s53, s{S_KG}")
        a.e("s_lshl_b32 s55, s55, 6")
        a.e("s_add_u32 s55, s55, s54")
        a.e("v_lshlrev_b32 v5, 4, v1")
        a.e("s_lshl_b32 s56, s55, 10")
        a.e(f"s_add_u32 s56, s56, {WS_QF}")
        a.e("v_add_u32 v6, s56, v5")
        a.e(f"global_store_dwordx4 v6, v[8:11], {sp(P_WS)} sc1")
        a.e("s_lshl_b32 s56, s55, 11")
        a.e(f"s_add_u32 s56, s56, {WS_KV}")
        a.e("v_add_u32 v6, s56, v5")
        a.e(f"global_store_dwordx4 v6, v[12:15], {sp(P_WS)} sc1")
        a.e("s_lshl_b32 s55, s53, 6")
        a.e("s_add_u32 s55, s55, s54")
        a.e("s_lshl_b32 s56, s55, 11")
        a.e(f"s_lshl_b32 s57, s{S_KG}, 9")
        a.e("s_add_u32 s56, s56, s57")
        a.e(f"s_add_u32 s56, s56, {WS_KV + 1024}")
        a.e("v_bfe_u32 v6, v1, 4, 1")
        a.e("v_lshlrev_b32 v6, 17, v6")
        a.e("v_and_b32 v7, 15, v1")
        a.e("v_lshl_add_u32 v7, v3, 4, v7")
        a.e("v_lshl_add_u32 v6, v7, 4, v6")
        a.e("v_add_u32 v6, s56, v6")
        a.e(f"global_store_dwordx4 v6, v[16:19], {sp(P_WS)} sc1")
        a.e(f"s_lshl_b32 s58, s{S_HG}, 8")
        a.e(f"s_add_u32 s58, s58, {WS_CNT + C1*256}")
        self.signal(58)
        self.stamp()

    def ln_finish(self, vsum, vsq, vr_, vb, n, count):
        a = self.a
        inv = 1.0 / count
        import struct
        invh = "0x%08x" % struct.unpack("<I", struct.pack("<f", inv))[0]
        eps = "0x%08x" % struct.unpack("<I", struct.pack("<f", 1e-5))[0]
        for i in range(n):
            a.e(f"v_mul_f32 v{vsum+i}, {invh}, v{vsum+i}")
            a.e(f"v_mul_f32 v{vsq+i}, {invh}, v{vsq+i}")
        for i in range(n):
            a.e(f"v_fma_f32 v{vsq+i}, -v{vsum+i}, v{vsum+i}, v{vsq+i}")
        for i in range(n):
            a.e(f"v_max_f32 v{vsq+i}, 0, v{vsq+i}")
        for i in range(n):
            a.e(f"v_add_f32 v{vsq+i}, {eps}, v{vsq+i}")
        for i in range(n):
            a.e(f"v_rsq_f32 v{vr_+i}, v{vsq+i}")
        a.e("s_nop 0")
        for i in range(n):
            a.e(f"v_mul_f32 v{vb+i}, v{vsum+i}, v{vr_+i}")
        for i in range(n):
            a.e(f"v_sub_f32 v{vb+i}, 0, v{vb+i}")

    def ksplit_reduce(self, acc, ntiles, s_kg, lds_base, tmp):
        a = self.a
        a.nop(16)
        l = a.newlabel("ksw")
        a.e(f"s_cmp_eq_u32 s{s_kg}, 0")
        a.e(f"s_cbranch_scc1 {l}")
        for t in range(ntiles):
            for r in range(8):
                a.e(f"v_swap_b32 v{acc+16*t+r}, v{acc+16*t+8+r}")
        a.label(l)
        a.e("s_barrier")
        a.e(f"s_mul_i32 s49, s{S_WAVE}, {ntiles*2048}")
        a.e(f"s_add_u32 s49, s49, {lds_base}")
        a.e(f"v_lshlrev_b32 v{tmp}, 4, v1")
        a.e(f"v_add_u32 v{tmp+1}, s49, v{tmp}")
        for t in range(ntiles):
            a.e(f"ds_write_b128 v{tmp+1}, {vr(acc+16*t+8,4)} offset:{2048*t}")
            a.e(f"ds_write_b128 v{tmp+1}, {vr(acc+16*t+12,4)} offset:{2048*t+1024}")
        a.e(f"s_xor_b32 s49, s{S_WAVE}, 4")
        a.e(f"s_mul_i32 s49, s49, {ntiles*2048}")
        a.e(f"s_add_u32 s49, s49, {lds_base}")
        a.e(f"v_add_u32 v{tmp+1}, s49, v{tmp}")
        a.e("s_waitcnt lgkmcnt(0)")
        a.e("s_barrier")
        for t in range(ntiles):
            a.e(f"ds_read_b128 {vr(acc+16*t+8,4)}, v{tmp+1} offset:{2048*t}")
            a.e(f"ds_read_b128 {vr(acc+16*t+12,4)}, v{tmp+1} offset:{2048*t+1024}")
        a.e("s_waitcnt lgkmcnt(0)")
        for t in range(ntiles):
            for r in range(8):
                a.e(f"v_add_f32 v{acc+16*t+r}, v{acc+16*t+r}, v{acc+16*t+8+r}")

    def p2(self):
        a = self.a
        S_HEAD, S_QB, S_IT, S_FB = 42, 43, 44, 45
        a.e(f"s_and_b32 s{S_HEAD}, s{S_WG}, 31")
        a.e(f"s_lshr_b32 s{S_QB}, s{S_WG}, 5")
        a.e(f"s_lshr_b32 s46, s{S_HEAD}, 2")
        a.e("s_lshl_b32 s46, s46, 8")
        a.e(f"s_add_u32 s46, s46, {WS_CNT + C1*256}")
        self.wait_cnt(46, 32)
        self.stamp()
        VQ, VNM, VS, VO, VP, VK, VV = 4, 16, 32, 64, 80, 88, 96
        VKA, VVA = 8, 9
        a.e(f"s_lshl_b32 s46, s{S_HEAD}, 17")
        a.e(f"s_add_u32 s46, s46, {WS_KV}")
        a.srd(4, P_WS, 131072, "s46")
        a.e("v_lshlrev_b32 v10, 4, v1")
        a.e(f"s_lshl_b32 s47, s{S_WAVE}, 10")
        a.e(f"s_lshl_b32 s48, s{S_HEAD}, 6")
        a.e(f"s_lshl_b32 s49, s{S_QB}, 3")
        a.e("s_add_u32 s48, s48, s49")
        a.e(f"s_add_u32 s48, s48, s{S_WAVE}")
        a.e("s_lshl_b32 s48, s48, 10")
        a.e(f"s_add_u32 s48, s48, {WS_QF}")
        a.e("v_add_u32 v11, s48, v10")
        a.e(f"global_load_dwordx4 {vr(VQ,4)}, v11, {sp(P_WS)} sc1")
        for i in range(16):
            a.e("s_mov_b32 m0, s47")
            a.e("s_nop 0")
            a.e("buffer_load_dwordx4 v10, s[4:7], s47 offen sc1 lds")
            if i < 15:
                a.e("s_add_u32 s47, s47, 8192")
        a.e(f"v_lshlrev_b32 v{VKA}, 4, v1")
        a.e("v_and_b32 v11, 15, v1")
        a.e("v_lshl_add_u32 v11, v3, 4, v11")
        a.e("v_lshlrev_b32 v11, 4, v11")
        a.e(f"v_add_u32 v{VVA}, 1024, v11")
        for r in range(16):
            a.e(f"v_mov_b32 v{VV+r}, 0x3f803f80")
        a.e("s_mov_b32 s50, 0xffff")
        a.e("s_mov_b32 s51, 0xffff")
        a.e(f"s_mov_b32 s{S_FB}, 0")
        a.e("s_waitcnt vmcnt(12)")
        a.e("s_barrier")
        a.e(f"ds_read_b128 {vr(VK,4)}, v{VKA}")
        a.e("s_waitcnt lgkmcnt(0)")
        a.e(f"v_mfma_f32_32x32x16_bf16 {vr(VS,16)}, {vr(VK,4)}, {vr(VQ,4)}, 0")
        a.nop(16)
        self.att_max_to_nm(VS, VNM, first=True)
        lstart = a.newlabel("att_start")
        lloop = a.newlabel("att_loop")
        a.label(lstart)
        for r in range(16):
            a.e(f"v_mov_b32 v{VO+r}, 0")
        a.e(f"v_lshlrev_b32 v{VKA}, 4, v1")
        a.e(f"v_add_u32 v{VVA}, 1024, v11")
        a.e(f"ds_read_b128 {vr(VK,4)}, v{VKA}")
        a.e(f"ds_read_b128 {vr(VK+4,4)}, v{VKA} offset:2048")
        a.e("s_mov_b64 exec, s[50:51]")
        a.e(f"ds_read_b128 {vr(VV,4)}, v{VVA}")
        a.e(f"ds_read_b128 {vr(VV+4,4)}, v{VVA} offset:512")
        a.e("s_mov_b64 exec, -1")
        a.e("s_waitcnt lgkmcnt(0)")
        a.e(f"v_mfma_f32_32x32x16_bf16 {vr(VS,16)}, {vr(VK,4)}, {vr(VQ,4)}, {vr(VNM,16)}")
        for k in range(4, 8):
            a.e(f"v_mov_b32 v{VP+k}, 0")
        for k in range(4):
            a.e(f"v_mov_b32 v{VV+12+k}, 0x3f803f80")
        a.e(f"s_mov_b32 s{S_IT}, 0")
        if self.o.get('attprof'): self.stamp(); a.e("s_waitcnt lgkmcnt(0)")
        a.nop(16)
        a.raw(".p2align 6")
        a.label(lloop)
        U = 8
        for i in range(U):
            p = i & 1
            S0, S1 = VS + 16 * p, VS + 16 * (p ^ 1)
            ex = lambda r: a.e(f"v_exp_f32 v{S0+r}, v{S0+r}")
            cv = lambda k: a.e(f"v_cvt_pk_bf16_f32 v{VP+k}, v{S0+2*k}, v{S0+2*k+1}")
            ex(0); ex(1)
            a.e(f"v_mfma_f32_32x32x16_bf16 {vr(VO,16)}, {vr(VV+8*(p^1)+4,4)}, {vr(VP+4,4)}, {vr(VO,16)}")
            X = self.o.get('attx', 0)
            if not (X & 1): a.e("s_mov_b64 exec, s[50:51]")
            if not (X & 2):
                a.e(f"ds_read_b128 {vr(VV+8*(p^1),4)}, v{VVA} offset:{(i+1)*2048}")
                a.e(f"ds_read_b128 {vr(VV+8*(p^1)+4,4)}, v{VVA} offset:{(i+1)*2048+512}")
            if not (X & 1): a.e("s_mov_b64 exec, -1")
            if not (X & 2):
                a.e(f"ds_read_b128 {vr(VK+4*p,4)}, v{VKA} offset:{(i+2)*2048}")
            ex(2); ex(3); ex(4); ex(5)
            if not (X & 2): a.e("s_waitcnt lgkmcnt(3)")
            a.e(f"v_mfma_f32_32x32x16_bf16 {vr(S1,16)}, {vr(VK+4*(p^1),4)}, {vr(VQ,4)}, {vr(VNM,16)}")
            ex(6); ex(7); ex(8)
            cv(0); cv(1); cv(2); cv(3)
            ex(9); ex(10)
            a.e(f"v_mfma_f32_32x32x16_bf16 {vr(VO,16)}, {vr(VV+8*p,4)}, {vr(VP,4)}, {vr(VO,16)}")
            for r in range(11, 16):
                ex(r)
            a.e(f"v_cvt_pk_bf16_f32 v{VP+4}, v{S0+8}, v{S0+9}")
            cv(5); cv(6); cv(7)
        a.e(f"v_add_u32 v{VKA}, {U*2048}, v{VKA}")
        a.e(f"v_add_u32 v{VVA}, {U*2048}, v{VVA}")
        lskip = a.newlabel("att_nw")
        a.e(f"s_or_b32 s46, s{S_IT}, s{S_FB}")
        a.e("s_cmp_lg_u32 s46, 0")
        a.e(f"s_cbranch_scc1 {lskip}")
        a.e("s_waitcnt vmcnt(0)")
        a.e("s_barrier")
        a.label(lskip)
        a.e(f"s_add_u32 s{S_IT}, s{S_IT}, 1")
        a.e(f"s_cmp_lt_u32 s{S_IT}, {64//U}")
        a.e(f"s_cbranch_scc1 {lloop}")
        a.e(f"v_mfma_f32_32x32x16_bf16 {vr(VO,16)}, {vr(VV+8+4,4)}, {vr(VP+4,4)}, {vr(VO,16)}")
        a.e("s_waitcnt lgkmcnt(0)")
        a.nop(16)
        ldone = a.newlabel("att_done")
        a.e(f"s_cmp_lg_u32 s{S_FB}, 0")
        a.e(f"s_cbranch_scc1 {ldone}")
        a.e("v_mov_b32 v12, 0x5f800000")
        a.e(f"v_cmp_nlt_f32 vcc, v{VO+8}, v12")
        a.e(f"s_cbranch_vccz {ldone}")
        a.e(f"s_mov_b32 s{S_FB}, 1")
        a.e(f"v_lshlrev_b32 v{VKA}, 4, v1")
        a.e("v_mov_b32 v12, 0xff800000")
        a.e(f"s_mov_b32 s{S_IT}, 0")
        lfb = a.newlabel("att_fb")
        a.label(lfb)
        a.e(f"ds_read_b128 {vr(VK,4)}, v{VKA}")
        a.e(f"v_add_u32 v{VKA}, 2048, v{VKA}")
        a.e("s_waitcnt lgkmcnt(0)")
        a.e(f"v_mfma_f32_32x32x16_bf16 {vr(VS,16)}, {vr(VK,4)}, {vr(VQ,4)}, 0")
        a.nop(16)
        for r in range(0, 16, 2):
            a.e(f"v_max3_f32 v12, v{VS+r}, v{VS+r+1}, v12")
        a.e(f"s_add_u32 s{S_IT}, s{S_IT}, 1")
        a.e(f"s_cmp_lt_u32 s{S_IT}, 64")
        a.e(f"s_cbranch_scc1 {lfb}")
        self.att_max_to_nm(VS, VNM, first=False)
        a.e(f"s_branch {lstart}")
        a.label(ldone)
        a.e(f"v_rcp_f32 v12, v{VO+8}")
        a.e("s_nop 0")
        for r in range(8):
            a.e(f"v_mul_f32 v{VO+r}, v{VO+r}, v12")
        for k in range(4):
            a.e(f"v_cvt_pk_bf16_f32 v{VP+k}, v{VO+2*k}, v{VO+2*k+1}")
        a.e(f"s_lshl_b32 s46, s{S_QB}, 3")
        a.e(f"s_add_u32 s46, s46, s{S_WAVE}")
        a.e("s_lshl_b32 s46, s46, 5")
        a.e(f"s_add_u32 s46, s46, s{S_HEAD}")
        a.e("s_lshl_b32 s46, s46, 10")
        a.e(f"s_add_u32 s46, s46, {WS_OF}")
        a.e("v_lshlrev_b32 v10, 4, v1")
        a.e("v_add_u32 v10, s46, v10")
        a.e(f"global_store_dwordx4 v10, {vr(VP,4)}, {sp(P_WS)} sc1")
        self.stamp()
        a.e(f"s_lshl_b32 s58, s{S_QB}, 8")
        a.e(f"s_add_u32 s58, s58, {WS_CNT + C2*256}")
        self.signal(58)
        self.stamp()

    def att_max_to_nm(self, VS, VNM, first):
        a = self.a
        if first:
            a.e(f"v_max3_f32 v12, v{VS}, v{VS+1}, v{VS+2}")
            for r in range(3, 15, 2):
                a.e(f"v_max3_f32 v12, v{VS+r}, v{VS+r+1}, v12")
            a.e(f"v_max_f32 v12, v{VS+15}, v12")
        a.e("v_mov_b32 v13, v12")
        a.e("s_nop 1")
        a.e("v_permlane32_swap_b32 v12, v13")
        a.e("s_nop 1")
        a.e("v_max_f32 v12, v12, v13")
        a.e("v_sub_f32 v12, 0, v12")
        for r in range(16):
            a.e(f"v_mov_b32 v{VNM+r}, v12")

    def wtile64_dma(self, wptr, wbytes, nrows, s_cb, lds_base):
        a = self.a
        a.e("v_lshrrev_b32 v10, 3, v1")
        a.e("v_lshlrev_b32 v10, 10, v10")
        a.e("v_bfe_u32 v11, v1, 4, 1")
        a.e("v_lshlrev_b32 v11, 2, v11")
        a.e("v_and_b32 v12, 7, v1")
        a.e("v_xor_b32 v11, v11, v12")
        a.e("v_lshl_add_u32 v10, v11, 4, v10")
        a.e(f"s_lshl_b32 s46, s{s_cb}, 7")
        a.e(f"s_add_u32 s8, s{wptr}, s46")
        a.e(f"s_addc_u32 s9, s{wptr+1}, 0")
        a.e(f"s_sub_u32 s10, {wbytes}, s46")
        a.e("s_mov_b32 s11, 0x20000")
        npieces = nrows // 8
        per = npieces // 8
        a.e(f"s_mul_i32 s47, s{S_WAVE}, {per*8*1024}")
        a.e(f"s_mul_i32 s48, s{S_WAVE}, {per*1024}")
        if lds_base:
            a.e(f"s_add_u32 s48, s48, {lds_base}")
        for i in range(per):
            a.e("s_mov_b32 m0, s48")
            a.e("s_nop 0")
            a.e("buffer_load_dwordx4 v10, s[8:11], s47 offen lds")
            if i < per - 1:
                a.e("s_add_u32 s47, s47, 8192")
                a.e("s_add_u32 s48, s48, 1024")

    def small_gemm(self, nks, t_off, s_rb, s_kg, s_tt, s_ft, lds_w, ACC=192, VT=16):
        a = self.a
        half = nks // 2
        a.e(f"s_lshl_b32 s46, s{s_rb}, 1")
        a.e(f"s_add_u32 s46, s46, s{s_tt}")
        a.e(f"s_mul_i32 s46, s46, {nks}")
        a.e(f"s_mul_i32 s47, s{s_kg}, {half}")
        a.e("s_add_u32 s46, s46, s47")
        a.e("s_lshl_b32 s46, s46, 10")
        a.e(f"s_add_u32 s46, s46, {t_off}")
        a.srd(4, P_WS, half * 1024, "s46")
        a.e("v_lshlrev_b32 v10, 4, v1")
        a.e("s_mov_b32 s47, 0")
        for i in range(half):
            a.e(f"buffer_load_dwordx4 {vr(VT+4*i,4)}, v10, s[4:7], s47 offen offset:{(i%4)*1024} sc1")
            if i % 4 == 3 and i < half - 1:
                a.e("s_add_u32 s47, s47, 4096")
        a.e("v_bfe_u32 v11, v1, 2, 2")
        a.e("v_lshl_add_u32 v11, v3, 2, v11")
        a.e("v_lshlrev_b32 v11, 7, v11")
        a.e("v_bfe_u32 v12, v1, 3, 1")
        a.e(f"v_xor_b32 v12, s{s_ft}, v12")
        a.e("v_lshl_add_u32 v11, v12, 6, v11")
        a.e("v_bfe_u32 v12, v1, 4, 1")
        a.e("v_lshl_add_u32 v11, v12, 5, v11")
        a.e("v_and_b32 v12, 3, v1")
        a.e("v_lshl_add_u32 v11, v12, 3, v11")
        a.e(f"s_mul_i32 s47, s{s_kg}, {half*2048}")
        if lds_w:
            a.e(f"s_add_u32 s47, s47, {lds_w}")
        a.e("v_add_u32 v11, s47, v11")
        for r in range(16):
            a.e(f"v_mov_b32 v{ACC+r}, 0")
        VWF = 160
        G = 4
        def rdw(i):
            w = VWF + 4 * (i % (2 * G))
            a.e(f"ds_read_b64_tr_b16 {vr(w,2)}, v11 offset:{i*2048}")
            a.e(f"ds_read_b64_tr_b16 {vr(w+2,2)}, v11 offset:{i*2048+1024}")
        ngrp = half // G
        for i in range(G):
            rdw(i)
        for g in range(ngrp):
            nxt = g + 1 < ngrp
            if nxt:
                for i in range(G):
                    rdw((g + 1) * G + i)
            rem = half - (g + 1) * G
            a.e(f"s_waitcnt vmcnt({rem}) lgkmcnt({2*G if nxt else 0})")
            for i in range(G):
                k = g * G + i
                w = VWF + 4 * (k % (2 * G))
                a.e(f"v_mfma_f32_32x32x16_bf16 {vr(ACC,16)}, {vr(w,4)}, {vr(VT+4*k,4)}, {vr(ACC,16)}")

    def feat_vec_load(self, dst, sect, s_f0):
        a = self.a
        a.e(f"s_lshl_b32 s47, s{s_f0}, 2")
        a.e(f"s_add_u32 s47, s47, {WS_MODV + sect*2048}")
        a.e("v_lshlrev_b32 v12, 4, v3")
        a.e("v_add_u32 v12, s47, v12")
        a.e(f"global_load_dwordx4 {vr(dst,4)}, v12, {sp(P_WS)} sc1")
        a.e(f"global_load_dwordx4 {vr(dst+4,4)}, v12, {sp(P_WS)} offset:32 sc1")

    def p3(self):
        a = self.a
        S_RB, S_CB, S_KG, S_TT, S_FT, S_F0 = 42, 43, 50, 51, 52, 53
        a.e(f"s_lshr_b32 s{S_RB}, s{S_WG}, 3")
        a.e(f"s_and_b32 s{S_CB}, s{S_WG}, 7")
        a.e(f"s_lshr_b32 s{S_KG}, s{S_WAVE}, 2")
        a.e(f"s_and_b32 s{S_TT}, s{S_WAVE}, 1")
        a.e(f"s_bfe_u32 s{S_FT}, s{S_WAVE}, 0x10001")
        self.wtile64_dma(P_WO, 524288, 512, S_CB, 0)
        a.e(f"s_lshl_b32 s{S_F0}, s{S_CB}, 6")
        a.e(f"s_lshl_b32 s46, s{S_FT}, 5")
        a.e(f"s_add_u32 s{S_F0}, s{S_F0}, s46")
        a.e(f"s_lshl_b32 s46, s{S_KG}, 4")
        a.e(f"s_add_u32 s{S_F0}, s{S_F0}, s46")
        VXR, VGA = 240, 244
        a.e(f"s_lshl_b32 s46, s{S_RB}, 16")
        a.e(f"s_lshl_b32 s47, s{S_TT}, 15")
        a.e("s_add_u32 s46, s46, s47")
        a.e(f"s_lshl_b32 s47, s{S_F0}, 1")
        a.e("s_add_u32 s46, s46, s47")
        a.e("v_lshlrev_b32 v12, 10, v2")
        a.e("v_lshl_add_u32 v12, v3, 3, v12")
        a.e("v_add_u32 v12, s46, v12")
        a.e(f"global_load_dwordx2 {vr(VXR,2)}, v12, {sp(P_X)}")
        a.e(f"global_load_dwordx2 {vr(VXR+2,2)}, v12, {sp(P_X)} offset:16")
        a.e(f"s_lshr_b32 s46, s{S_RB}, 2")
        a.e("s_lshl_b32 s46, s46, 8")
        a.e(f"s_add_u32 s46, s46, {WS_CNT + C2*256}")
        self.wait_cnt(46, 32)
        self.stamp()
        self.feat_vec_load(VGA, 2, S_F0)
        a.e("s_waitcnt vmcnt(2)")
        a.e("s_barrier")
        self.small_gemm(32, WS_OF, S_RB, S_KG, S_TT, S_FT, 0)
        self.stamp()
        ACC = 192
        self.ksplit_reduce(ACC, 1, S_KG, 65536, tmp=8)
        for k in range(4):
            a.e(f"v_lshlrev_b32 v{16+2*k}, 16, v{VXR+k}")
            a.e(f"v_and_b32 v{17+2*k}, 0xffff0000, v{VXR+k}")
        for r in range(8):
            a.e(f"v_fma_f32 v{ACC+r}, v{ACC+r}, v{VGA+r}, v{16+r}")
        for k in range(4):
            a.e(f"v_cvt_pk_bf16_f32 v{8+k}, v{ACC+2*k}, v{ACC+2*k+1}")
        a.e(f"s_lshl_b32 s46, s{S_RB}, 1")
        a.e(f"s_add_u32 s46, s46, s{S_TT}")
        a.e("s_lshl_b32 s46, s46, 5")
        a.e(f"s_lshr_b32 s47, s{S_F0}, 4")
        a.e("s_add_u32 s46, s46, s47")
        a.e("s_lshl_b32 s46, s46, 10")
        a.e(f"s_add_u32 s46, s46, {WS_X1F}")
        a.e("v_lshlrev_b32 v12, 4, v1")
        a.e("v_add_u32 v12, s46, v12")
        a.e(f"global_store_dwordx4 v12, v[8:11], {sp(P_WS)} sc1")
        a.e(f"s_lshl_b32 s58, s{S_RB}, 8")
        a.e(f"s_add_u32 s58, s58, {WS_CNT + C3*256}")
        self.signal(58)
        self.stamp()

    def p4(self):
        a = self.a
        S_RB, S_J, S_FT = 42, 43, 52
        RING, STG = 65536, 28672
        SCR = RING + 3 * STG
        a.e(f"s_lshr_b32 s{S_RB}, s{S_WG}, 3")
        a.e(f"s_and_b32 s{S_J}, s{S_WG}, 7")
        a.e(f"s_min_u32 s{S_FT}, s{S_WAVE}, 6")
        VWD = 188
        a.e(f"s_lshl_b32 s46, s{S_WAVE}, 8")
        for i in range(4):
            a.e(f"s_add_u32 s47, s46, {64*i}")
            a.e("v_add_u32 v5, s47, v1")
            a.e("v_mul_u32_u24 v6, 2341, v5")
            a.e("v_lshrrev_b32 v6, 16, v6")
            a.e("v_mul_u32_u24 v7, 28, v6")
            a.e("v_sub_u32 v5, v5, v7")
            a.e("v_mul_u32_u24 v6, 3584, v6")
            a.e(f"v_lshl_add_u32 v{VWD+i}, v5, 4, v6")
        a.e(f"s_mul_i32 s46, s{S_J}, 448")
        a.e(f"s_add_u32 s8, s{P_WIN}, s46")
        a.e(f"s_addc_u32 s9, s{P_WIN+1}, 0")
        a.e("s_sub_u32 s10, 1835008, s46")
        a.e("s_mov_b32 s11, 0x20000")
        a.e(f"s_lshl_b32 s48, s{S_WAVE}, 12")
        a.e(f"s_add_u32 s48, s48, {RING}")

        def wdma(stage):
            l = a.newlabel("p4dma")
            a.e(f"s_cmp_eq_u32 s{S_WAVE}, 7")
            a.e(f"s_cbranch_scc1 {l}")
            a.e(f"s_mov_b32 s49, {stage*64*3584}")
            for i in range(4):
                a.e(f"s_add_u32 m0, s48, {(stage%3)*STG + i*1024}")
                a.e("s_nop 0")
                a.e(f"buffer_load_dwordx4 v{VWD+i}, s[8:11], s49 offen lds")
            a.label(l)
        for st in range(3):
            wdma(st)
        l7 = a.newlabel("p4m")
        a.e(f"s_cmp_lg_u32 s{S_WAVE}, 7")
        a.e(f"s_cbranch_scc1 {l7}")
        a.srd(12, P_WS, 4096, WS_MODV + 3 * 2048)
        a.e("v_lshlrev_b32 v5, 4, v1")
        for i in range(4):
            a.e(f"s_mov_b32 m0, {SCR + i*1024}")
            a.e(f"s_mov_b32 s49, {i*1024}")
            a.e("buffer_load_dwordx4 v5, s[12:15], s49 offen sc1 lds")
        a.label(l7)
        a.e(f"s_lshl_b32 s46, s{S_RB}, 8")
        a.e(f"s_add_u32 s46, s46, {WS_CNT + C3*256}")
        self.wait_cnt(46, 8)
        self.stamp()
        VX = 8
        a.e(f"s_and_b32 s50, s{S_WAVE}, 1")
        a.e(f"s_lshr_b32 s51, s{S_WAVE}, 1")
        a.e(f"s_lshl_b32 s46, s{S_RB}, 1")
        a.e("s_add_u32 s46, s46, s50")
        a.e("s_lshl_b32 s46, s46, 5")
        a.e("s_lshl_b32 s47, s51, 3")
        a.e("s_add_u32 s46, s46, s47")
        a.e("s_lshl_b32 s46, s46, 10")
        a.e(f"s_add_u32 s46, s46, {WS_X1F}")
        a.srd(4, P_WS, 8192, "s46")
        a.e("v_lshlrev_b32 v5, 4, v1")
        a.e("s_mov_b32 s47, 4096")
        for i in range(8):
            so = "0" if i < 4 else "s47"
            a.e(f"buffer_load_dwordx4 {vr(VX+4*i,4)}, v5, s[4:7], {so} offen offset:{(i%4)*1024} sc1")
        a.e("v_mov_b32 v6, 0x3f803f80")
        for r in range(4):
            a.e(f"v_mov_b32 v{170+r}, 0")
        a.e("s_waitcnt vmcnt(0)")
        for k in range(0, 32, 2):
            a.e(f"v_dot2_f32_bf16 v170, v{VX+k}, v6, v170")
            a.e(f"v_dot2_f32_bf16 v171, v{VX+k}, v{VX+k}, v171")
            a.e(f"v_dot2_f32_bf16 v172, v{VX+k+1}, v6, v172")
            a.e(f"v_dot2_f32_bf16 v173, v{VX+k+1}, v{VX+k+1}, v173")
        a.nop(3)
        a.e("v_add_f32 v170, v170, v172")
        a.e("v_add_f32 v171, v171, v173")
        a.e(f"s_lshl_b32 s46, s{S_WAVE}, 9")
        a.e(f"s_add_u32 s46, s46, {SCR + 4096}")
        a.e("v_lshlrev_b32 v7, 3, v1")
        a.e("v_add_u32 v7, s46, v7")
        a.e("ds_write_b64 v7, v[170:171]")
        a.e("s_waitcnt lgkmcnt(0)")
        a.e("s_barrier")
        a.e("s_lshl_b32 s46, s50, 9")
        a.e(f"s_add_u32 s46, s46, {SCR + 4096}")
        a.e("v_lshlrev_b32 v7, 3, v2")
        a.e("v_add_u32 v7, s46, v7")
        for i in range(4):
            a.e(f"ds_read_b64 {vr(172+4*i,2)}, v7 offset:{1024*i}")
            a.e(f"ds_read_b64 {vr(174+4*i,2)}, v7 offset:{1024*i+256}")
        a.e("s_waitcnt lgkmcnt(0)")
        a.e("v_add_f32 v170, v172, v174")
        a.e("v_add_f32 v171, v173, v175")
        for i in range(2, 8):
            a.e(f"v_add_f32 v170, v170, v{172+2*i}")
            a.e(f"v_add_f32 v171, v171, v{173+2*i}")
        self.ln_finish(170, 171, 172, 173, 1, 512)
        a.e("s_lshl_b32 s46, s51, 9")
        a.e(f"s_add_u32 s46, s46, {SCR}")
        a.e("v_lshlrev_b32 v7, 4, v3")
        a.e("v_add_u32 v7, s46, v7")
        a.e("s_lshl_b32 s46, s50, 15")
        a.e("s_lshl_b32 s47, s51, 13")
        a.e("s_add_u32 s46, s46, s47")
        a.e("v_add_u32 v5, s46, v5")
        for i in range(8):
            b = 40 + 16 * (i & 1)
            a.e(f"ds_read_b128 {vr(b,4)}, v7 offset:{64*i}")
            a.e(f"ds_read_b128 {vr(b+4,4)}, v7 offset:{64*i+32}")
            a.e(f"ds_read_b128 {vr(b+8,4)}, v7 offset:{2048+64*i}")
            a.e(f"ds_read_b128 {vr(b+12,4)}, v7 offset:{2048+64*i+32}")
            n = 72
            for k in range(4):
                a.e(f"v_lshlrev_b32 v{n+2*k}, 16, v{VX+4*i+k}")
                a.e(f"v_and_b32 v{n+2*k+1}, 0xffff0000, v{VX+4*i+k}")
            for k in range(8):
                a.e(f"v_fma_f32 v{n+k}, v{n+k}, v172, v173")
            a.e("s_waitcnt lgkmcnt(0)")
            for k in range(8):
                a.e(f"v_fma_f32 v{n+k}, v{n+k}, v{b+8+k}, v{b+k}")
            for k in range(4):
                a.e(f"v_cvt_pk_bf16_f32 v{VX+4*i+k}, v{n+2*k}, v{n+2*k+1}")
            a.e(f"ds_write_b128 v5, {vr(VX+4*i,4)} offset:{1024*i}")
        self.stamp()
        VTA, VWA = 170, 171
        a.e(f"v_lshlrev_b32 v{VTA}, 4, v1")
        a.e("v_bfe_u32 v5, v1, 2, 2")
        a.e("v_lshl_add_u32 v5, v3, 2, v5")
        a.e("v_mul_u32_u24 v5, 448, v5")
        a.e("v_bfe_u32 v6, v1, 4, 1")
        a.e("v_lshl_add_u32 v5, v6, 5, v5")
        a.e("v_and_b32 v6, 3, v1")
        a.e("v_lshl_add_u32 v5, v6, 3, v5")
        a.e(f"s_lshl_b32 s46, s{S_FT}, 6")
        a.e(f"s_add_u32 s46, s46, {RING}")
        a.e(f"v_add_u32 v{VWA}, s46, v5")
        a.e(f"v_add_u32 v{VWA+1}, {2*STG}, v{VWA}")
        ACC = 192
        for r in range(32):
            a.e(f"v_mov_b32 v{ACC+r}, 0")
        def rd_frags(st):
            base = 8 + 48 * (st & 1)
            slot = st % 3
            wa = VWA + (1 if slot == 2 else 0)
            wo = (slot % 2) * STG if slot < 2 else 0
            for u in range(4):
                s_ = 4 * st + u
                a.e(f"ds_read_b128 {vr(base+12*u,4)}, v{VTA} offset:{1024*s_}")
                a.e(f"ds_read_b128 {vr(base+12*u+4,4)}, v{VTA} offset:{32768+1024*s_}")
                a.e(f"ds_read_b64_tr_b16 {vr(base+12*u+8,2)}, v{wa} offset:{wo + 16*u*448}")
                a.e(f"ds_read_b64_tr_b16 {vr(base+12*u+10,2)}, v{wa} offset:{wo + (16*u+8)*448}")
        a.e("s_waitcnt vmcnt(0) lgkmcnt(0)")
        a.e("s_barrier")
        rd_frags(0)
        for st in range(8):
            if st < 7:
                younger = min(7, st + 2) - (st + 1)
                a.e(f"s_waitcnt vmcnt({4*younger}) lgkmcnt(0)")
                a.e("s_barrier")
                if st + 3 <= 7:
                    wdma(st + 3)
                rd_frags(st + 1)
            else:
                a.e("s_waitcnt lgkmcnt(0)")
            base = 8 + 48 * (st & 1)
            for u in range(4):
                w = vr(base + 12 * u + 8, 4)
                a.e(f"v_mfma_f32_32x32x16_bf16 {vr(ACC,16)}, {w}, {vr(base+12*u,4)}, {vr(ACC,16)}")
                a.e(f"v_mfma_f32_32x32x16_bf16 {vr(ACC+16,16)}, {w}, {vr(base+12*u+4,4)}, {vr(ACC+16,16)}")
        self.stamp()
        a.nop(16)
        a.e("s_mov_b32 s46, 0xc0135761")
        a.e("s_mov_b32 s47, 0xbdd2d3e8")
        for blk in range(0, 32, 8):
            rs = range(blk, blk + 8)
            for r in rs:
                a.e(f"v_mul_f32 v{8+r-blk}, v{ACC+r}, v{ACC+r}")
            for r in rs:
                a.e(f"v_mov_b32 v{16+r-blk}, s46")
            for r in rs:
                a.e(f"v_fmac_f32 v{16+r-blk}, s47, v{8+r-blk}")
            for r in rs:
                a.e(f"v_mul_f32 v{16+r-blk}, v{16+r-blk}, v{ACC+r}")
            for r in rs:
                a.e(f"v_exp_f32 v{16+r-blk}, v{16+r-blk}")
            a.e("s_nop 0")
            for r in rs:
                a.e(f"v_add_f32 v{16+r-blk}, 1.0, v{16+r-blk}")
            for r in rs:
                a.e(f"v_rcp_f32 v{16+r-blk}, v{16+r-blk}")
            a.e("s_nop 0")
            for r in rs:
                a.e(f"v_mul_f32 v{ACC+r}, v{ACC+r}, v{16+r-blk}")
        lz2 = a.newlabel("z2")
        lsig = a.newlabel("p4sig")
        a.e(f"s_cmp_ge_u32 s{S_J}, 4")
        a.e(f"s_cbranch_scc1 {lz2}")
        a.e(f"s_cmp_eq_u32 s{S_WAVE}, 7")
        a.e(f"s_cbranch_scc1 {lsig}")
        for k in range(16):
            a.e(f"v_cvt_pk_bf16_f32 v{8+k}, v{ACC+2*k}, v{ACC+2*k+1}")
        a.e(f"s_mul_i32 s46, s{S_J}, 7")
        a.e(f"s_add_u32 s46, s46, s{S_FT}")
        a.e("s_lshl_b32 s46, s46, 1")
        a.e(f"s_mul_i32 s47, s{S_RB}, 112")
        a.e("s_add_u32 s46, s46, s47")
        a.e("s_lshl_b32 s46, s46, 10")
        a.e(f"s_add_u32 s46, s46, {WS_Z1F}")
        a.e("v_lshlrev_b32 v5, 4, v1")
        a.e("v_add_u32 v5, s46, v5")
        a.e(f"global_store_dwordx4 v5, v[8:11], {sp(P_WS)} sc1")
        a.e(f"global_store_dwordx4 v5, v[12:15], {sp(P_WS)} offset:1024 sc1")
        a.e(f"v_add_u32 v5, {56*1024}, v5")
        a.e(f"global_store_dwordx4 v5, v[16:19], {sp(P_WS)} sc1")
        a.e(f"global_store_dwordx4 v5, v[20:23], {sp(P_WS)} offset:1024 sc1")
        a.e(f"s_branch {lsig}")
        a.label(lz2)
        for t in range(2):
            A = ACC + 16 * t
            a.e(f"v_add_f32 v{8+2*t}, v{A}, v{A+1}")
            a.e(f"v_mul_f32 v{9+2*t}, v{A}, v{A}")
            a.e(f"v_fmac_f32 v{9+2*t}, v{A+1}, v{A+1}")
            for r in range(2, 16):
                a.e(f"v_add_f32 v{8+2*t}, v{8+2*t}, v{A+r}")
                a.e(f"v_fmac_f32 v{9+2*t}, v{A+r}, v{A+r}")
        a.e("s_barrier")
        a.e(f"s_lshl_b32 s46, s{S_WAVE}, 10")
        a.e("v_lshlrev_b32 v5, 3, v1")
        a.e("v_add_u32 v5, s46, v5")
        a.e("ds_write_b64 v5, v[8:9]")
        a.e("ds_write_b64 v5, v[10:11] offset:512")
        a.e("s_waitcnt lgkmcnt(0)")
        a.e("s_barrier")
        lw = a.newlabel("z2w")
        a.e(f"s_cmp_lg_u32 s{S_WAVE}, 0")
        a.e(f"s_cbranch_scc1 {lw}")
        a.e("v_lshlrev_b32 v5, 9, v3")
        a.e("v_lshl_add_u32 v5, v2, 3, v5")
        for w in range(7):
            a.e(f"ds_read_b64 {vr(16+4*w,2)}, v5 offset:{1024*w}")
            a.e(f"ds_read_b64 {vr(18+4*w,2)}, v5 offset:{1024*w+256}")
        a.e("s_waitcnt lgkmcnt(0)")
        for i in range(1, 14):
            a.e(f"v_add_f32 v16, v16, v{16+2*i}")
            a.e(f"v_add_f32 v17, v17, v{17+2*i}")
        a.e(f"s_lshl_b32 s46, s{S_RB}, 2")
        a.e(f"s_add_u32 s46, s46, s{S_J}")
        a.e("s_sub_u32 s46, s46, 4")
        a.e("s_lshl_b32 s46, s46, 9")
        a.e(f"s_add_u32 s46, s46, {WS_ZST}")
        a.e("v_lshlrev_b32 v5, 3, v1")
        a.e("v_add_u32 v5, s46, v5")
        a.e(f"global_store_dwordx2 v5, v[16:17], {sp(P_WS)} sc1")
        a.label(lw)
        a.e(f"s_lshl_b32 s58, s{S_RB}, 8")
        a.e(f"s_add_u32 s58, s58, {WS_CNT + CZ*256}")
        self.signal(58)
        self.wait_cnt(58, 4)
        a.e(f"s_lshl_b32 s46, s{S_RB}, 11")
        a.e(f"s_add_u32 s46, s46, {WS_ZST}")
        a.e("v_lshlrev_b32 v5, 3, v2")
        a.e("v_add_u32 v5, s46, v5")
        for t in range(2):
            for q in range(4):
                a.e(f"global_load_dwordx2 {vr(16+8*t+2*q,2)}, v5, {sp(P_WS)} offset:{512*q+256*t} sc1")
        a.e("s_waitcnt vmcnt(0)")
        for t in range(2):
            b = 16 + 8 * t
            for q in range(1, 4):
                a.e(f"v_add_f32 v{b}, v{b}, v{b+2*q}")
                a.e(f"v_add_f32 v{b+1}, v{b+1}, v{b+2*q+1}")
        a.e("v_mov_b32 v8, v16")
        a.e("v_mov_b32 v9, v24")
        a.e("v_mov_b32 v10, v17")
        a.e("v_mov_b32 v11, v25")
        self.ln_finish(8, 10, 12, 14, 2, 896)
        a.e(f"s_cmp_eq_u32 s{S_WAVE}, 7")
        a.e(f"s_cbranch_scc1 {lsig}")
        for t in range(2):
            for r in range(16):
                a.e(f"v_fma_f32 v{ACC+16*t+r}, v{ACC+16*t+r}, v{12+t}, v{14+t}")
        for k in range(16):
            a.e(f"v_cvt_pk_bf16_f32 v{16+k}, v{ACC+2*k}, v{ACC+2*k+1}")
        a.e("s_nop 1")
        for t in range(2):
            b = 16 + 8 * t
            a.e(f"v_permlane32_swap_b32 v{b}, v{b+2}")
            a.e(f"v_permlane32_swap_b32 v{b+1}, v{b+3}")
            a.e(f"v_permlane32_swap_b32 v{b+4}, v{b+6}")
            a.e(f"v_permlane32_swap_b32 v{b+5}, v{b+7}")
        a.e(f"s_sub_u32 s46, s{S_J}, 4")
        a.e("s_mul_i32 s46, s46, 224")
        a.e(f"s_lshl_b32 s47, s{S_FT}, 5")
        a.e("s_add_u32 s46, s46, s47")
        a.e("s_lshr_b32 s47, s46, 7")
        a.e("s_lshl_b32 s47, s47, 19")
        a.e("s_and_b32 s46, s46, 127")
        a.e("s_lshl_b32 s46, s46, 1")
        a.e("s_add_u32 s46, s46, s47")
        a.e(f"s_lshl_b32 s47, s{S_RB}, 14")
        a.e("s_add_u32 s46, s46, s47")
        a.e(f"s_add_u32 s46, s46, {WS_Z2N}")
        a.e("v_lshlrev_b32 v5, 8, v2")
        a.e("v_lshl_add_u32 v5, v3, 4, v5")
        a.e("v_add_u32 v5, s46, v5")
        for t in range(2):
            b = 16 + 8 * t
            a.e(f"global_store_dwordx4 v5, {vr(b,4)}, {sp(P_WS)} sc1")
            a.e(f"global_store_dwordx4 v5, {vr(b+4,4)}, {sp(P_WS)} offset:32 sc1")
            if t == 0:
                a.e("v_add_u32 v5, 8192, v5")
        a.label(lsig)
        a.e(f"s_and_b32 s58, s{S_WG}, 15")
        a.e("s_lshl_b32 s58, s58, 8")
        a.e(f"s_add_u32 s58, s58, {WS_CNT + C4*256}")
        self.signal(58)
        self.stamp()

    def p5(self):
        a = self.a
        S_TB, S_FB, S_KG, S_FI = 42, 43, 50, 52
        lskip = a.newlabel("p5skip")
        a.e(f"s_lshr_b32 s46, s{S_WG}, 3")
        a.e("s_cmp_ge_u32 s46, 28")
        a.e(f"s_cbranch_scc1 {lskip}")
        a.e("s_mul_i32 s47, s46, 37")
        a.e("s_lshr_b32 s47, s47, 8")
        a.e("s_mul_i32 s48, s47, 7")
        a.e(f"s_sub_u32 s{S_FB}, s46, s48")
        a.e(f"s_and_b32 s48, s{S_WG}, 7")
        a.e("s_lshl_b32 s48, s48, 2")
        a.e(f"s_add_u32 s{S_TB}, s48, s47")
        a.e(f"s_lshr_b32 s{S_KG}, s{S_WAVE}, 2")
        a.e(f"s_and_b32 s{S_FI}, s{S_WAVE}, 3")
        NS, STG = 6, 24576
        VTD, VWD = 184, 185
        a.e("v_lshrrev_b32 v5, 3, v1")
        a.e(f"s_lshl_b32 s46, s{S_WAVE}, 3")
        a.e("v_add_u32 v5, s46, v5")
        a.e("v_bfe_u32 v6, v5, 1, 3")
        a.e("v_and_b32 v7, 7, v1")
        a.e("v_xor_b32 v6, v6, v7")
        a.e("v_lshlrev_b32 v5, 12, v5")
        a.e(f"v_lshl_add_u32 v{VTD}, v6, 4, v5")
        a.e("v_lshrrev_b32 v5, 4, v1")
        a.e("v_lshlrev_b32 v6, 2, v5")
        a.e("v_and_b32 v7, 15, v1")
        a.e("v_xor_b32 v6, v6, v7")
        a.e("v_lshlrev_b32 v5, 8, v5")
        a.e("v_lshl_add_u32 v5, v6, 4, v5")
        a.e(f"s_lshl_b32 s46, s{S_WAVE}, 11")
        a.e(f"v_add_u32 v{VWD}, s46, v5")
        a.e(f"s_lshl_b32 s46, s{S_TB}, 18")
        a.e(f"s_add_u32 s8, s{P_WSP}, s46")
        a.e(f"s_addc_u32 s9, s{P_WSP+1}, 0")
        a.e("s_mov_b32 s10, 262144")
        a.e("s_mov_b32 s11, 0x20000")
        a.e(f"s_lshl_b32 s46, s{S_FB}, 19")
        a.e(f"s_add_u32 s46, s46, {WS_Z2N}")
        a.srd(12, P_WS, 524288, "s46")
        a.e(f"s_lshl_b32 s54, s{S_WAVE}, 10")
        a.e(f"s_lshl_b32 s55, s{S_WAVE}, 11")
        a.e("s_add_u32 s55, s55, 8192")
        def tdma():
            a.e("s_add_u32 m0, s59, s54")
            a.e("s_nop 0")
            a.e(f"buffer_load_dwordx4 v{VTD}, s[8:11], s56 offen lds")
        def wdma():
            a.e("s_add_u32 m0, s59, s55")
            a.e("s_nop 0")
            a.e(f"buffer_load_dwordx4 v{VWD}, s[12:15], s57 offen sc1 lds")
            a.e("s_add_u32 m0, m0, 1024")
            a.e("s_nop 0")
            a.e(f"buffer_load_dwordx4 v{VWD}, s[12:15], s57 offen offset:1024 sc1 lds")
        PRE = NS - 1
        for st in range(PRE):
            a.e(f"s_mov_b32 s59, {st*STG}")
            a.e(f"s_mov_b32 s56, {st*128}")
            tdma()
        a.e(f"s_mov_b32 s46, {WS_CNT + C4*256}")
        self.wait_cnt(46, 16, nlines=16)
        self.stamp()
        for st in range(PRE):
            a.e(f"s_mov_b32 s59, {st*STG}")
            a.e(f"s_mov_b32 s57, {st*16384}")
            a.e("s_add_u32 m0, s59, s55")
            a.e("s_nop 0")
            a.e(f"buffer_load_dwordx4 v{VWD}, s[12:15], s57 offen sc1 lds")
            a.e(f"buffer_load_dwordx4 v{VWD}, s[12:15], s57 offen offset:1024 sc1 lds")
        VZ1, VB = 240, 248
        a.e(f"s_lshl_b32 s46, s{S_TB}, 1")
        a.e("s_mul_i32 s46, s46, 56")
        a.e(f"s_lshl_b32 s47, s{S_FB}, 3")
        a.e("s_add_u32 s46, s46, s47")
        a.e(f"s_lshl_b32 s47, s{S_FI}, 1")
        a.e("s_add_u32 s46, s46, s47")
        a.e(f"s_add_u32 s46, s46, s{S_KG}")
        a.e("s_lshl_b32 s46, s46, 10")
        a.e(f"s_mov_b32 s61, s46")
        a.e(f"s_add_u32 s46, s46, {WS_Z1F}")
        a.e("v_lshlrev_b32 v5, 4, v1")
        a.e("v_add_u32 v5, s46, v5")
        a.e(f"global_load_dwordx4 {vr(VZ1,4)}, v5, {sp(P_WS)} sc1")
        a.e(f"v_add_u32 v5, {56*1024}, v5")
        a.e(f"global_load_dwordx4 {vr(VZ1+4,4)}, v5, {sp(P_WS)} sc1")
        a.e(f"s_lshl_b32 s46, s{S_TB}, 7")
        a.e("v_lshlrev_b32 v5, 1, v2")
        a.e("v_add_u32 v5, s46, v5")
        a.e(f"global_load_ushort v{VB}, v5, {sp(P_BSP)}")
        a.e(f"global_load_ushort v{VB+1}, v5, {sp(P_BSP)} offset:64")
        VTA, VWA = 170, 172
        a.e("v_bfe_u32 v5, v2, 1, 3")
        a.e("v_xor_b32 v5, v5, v3")
        a.e("v_lshlrev_b32 v5, 4, v5")
        a.e("v_lshl_add_u32 v5, v2, 7, v5")
        a.e(f"s_lshl_b32 s46, s{S_KG}, 6")
        a.e(f"v_xor_b32 v{VTA}, s46, v5")
        a.e(f"v_xor_b32 v{VTA+1}, 32, v{VTA}")
        a.e("v_bfe_u32 v5, v1, 2, 2")
        a.e(f"v_xor_b32 v6, s{S_FI}, v5")
        a.e("v_lshl_add_u32 v5, v3, 3, v5")
        a.e("v_lshlrev_b32 v5, 8, v5")
        a.e("v_lshl_add_u32 v5, v6, 6, v5")
        a.e("v_bfe_u32 v6, v1, 4, 1")
        a.e("v_lshl_add_u32 v5, v6, 5, v5")
        a.e("v_and_b32 v6, 3, v1")
        a.e("v_lshl_add_u32 v5, v6, 3, v5")
        a.e(f"s_lshl_b32 s46, s{S_KG}, 13")
        a.e("s_add_u32 s46, s46, 8192")
        a.e(f"v_add_u32 v{VWA}, s46, v5")
        ACC = 192
        for r in range(32):
            a.e(f"v_mov_b32 v{ACC+r}, 0")
        def rd_frags(par):
            base = 8 + 24 * par
            for u in range(2):
                a.e(f"ds_read_b128 {vr(base+12*u,4)}, v{174+u}")
                a.e(f"ds_read_b128 {vr(base+12*u+4,4)}, v{174+u} offset:4096")
                a.e(f"ds_read_b64_tr_b16 {vr(base+12*u+8,2)}, v176 offset:{16*u*256}")
                a.e(f"ds_read_b64_tr_b16 {vr(base+12*u+10,2)}, v176 offset:{(16*u+4)*256}")
        def set_rd_slot():
            a.e(f"v_add_u32 v174, s62, v{VTA}")
            a.e(f"v_add_u32 v175, s62, v{VTA+1}")
            a.e(f"v_add_u32 v176, s62, v{VWA}")
        def mfmas(par):
            base = 8 + 24 * par
            for u in range(2):
                w = vr(base + 12 * u + 8, 4)
                a.e(f"v_mfma_f32_32x32x16_bf16 {vr(ACC,16)}, {w}, {vr(base+12*u,4)}, {vr(ACC,16)}")
                a.e(f"v_mfma_f32_32x32x16_bf16 {vr(ACC+16,16)}, {w}, {vr(base+12*u+4,4)}, {vr(ACC+16,16)}")
        a.e("s_waitcnt vmcnt(0)")
        a.e("s_barrier")
        a.e("s_mov_b32 s62, 0")
        set_rd_slot()
        rd_frags(0)
        a.e(f"s_mov_b32 s59, {PRE*STG}")
        a.e(f"s_mov_b32 s56, {PRE*128}")
        a.e(f"s_mov_b32 s57, {PRE*16384}")
        a.e("s_mov_b32 s60, 0")
        lloop = a.newlabel("p5loop")
        a.label(lloop)
        for par in range(2):
            lt = a.newlabel("p5tail")
            a.e(f"s_cmp_le_u32 s56, {32*128}")
            a.e(f"s_cbranch_scc1 {lt}")
            a.e("s_waitcnt vmcnt(0)")
            a.label(lt)
            a.e(f"s_waitcnt vmcnt({3*(PRE-2)}) lgkmcnt(0)")
            a.e("s_barrier")
            ld = a.newlabel("p5nd")
            a.e(f"s_cmp_ge_u32 s56, {32*128}")
            a.e(f"s_cbranch_scc1 {ld}")
            tdma()
            a.e("s_add_u32 m0, s59, s55")
            a.e("s_nop 0")
            a.e(f"buffer_load_dwordx4 v{VWD}, s[12:15], s57 offen sc1 lds")
            a.e(f"buffer_load_dwordx4 v{VWD}, s[12:15], s57 offen offset:1024 sc1 lds")
            a.label(ld)
            a.e("s_add_u32 s56, s56, 128")
            a.e("s_add_u32 s57, s57, 16384")
            a.e(f"s_add_u32 s59, s59, {STG}")
            a.e(f"s_cmp_eq_u32 s59, {NS*STG}")
            a.e(f"s_cselect_b32 s59, 0, s59")
            a.e(f"s_add_u32 s62, s62, {STG}")
            a.e(f"s_cmp_eq_u32 s62, {NS*STG}")
            a.e(f"s_cselect_b32 s62, 0, s62")
            set_rd_slot()
            rd_frags(par ^ 1)
            mfmas(par)
        a.e("s_add_u32 s60, s60, 2")
        a.e("s_cmp_lt_u32 s60, 32")
        a.e(f"s_cbranch_scc1 {lloop}")
        self.stamp()
        a.e("s_waitcnt vmcnt(0) lgkmcnt(0)")
        self.ksplit_reduce(ACC, 2, S_KG, 0, tmp=8)
        for t in range(2):
            a.e(f"v_lshlrev_b32 v{VB+t}, 16, v{VB+t}")
        for t in range(2):
            for k in range(4):
                a.e(f"v_lshlrev_b32 v{16+2*k}, 16, v{VZ1+4*t+k}")
                a.e(f"v_and_b32 v{17+2*k}, 0xffff0000, v{VZ1+4*t+k}")
            for r in range(8):
                a.e(f"v_add_f32 v{ACC+16*t+r}, v{ACC+16*t+r}, v{VB+t}")
            for r in range(8):
                a.e(f"v_mul_f32 v{ACC+16*t+r}, v{ACC+16*t+r}, v{16+r}")
            for k in range(4):
                a.e(f"v_cvt_pk_bf16_f32 v{8+4*t+k}, v{ACC+16*t+2*k}, v{ACC+16*t+2*k+1}")
        a.e(f"s_add_u32 s46, s61, {WS_YF}")
        a.e("v_lshlrev_b32 v5, 4, v1")
        a.e("v_add_u32 v5, s46, v5")
        a.e(f"global_store_dwordx4 v5, v[8:11], {sp(P_WS)} sc1")
        a.e(f"v_add_u32 v5, {56*1024}, v5")
        a.e(f"global_store_dwordx4 v5, v[12:15], {sp(P_WS)} sc1")
        a.e(f"s_lshl_b32 s58, s{S_TB}, 8")
        a.e(f"s_add_u32 s58, s58, {WS_CNT + C5*256}")
        self.signal(58)
        a.label(lskip)
        self.stamp()

    def p6(self):
        a = self.a
        S_RB, S_CB, S_KG, S_TT, S_FT, S_F0 = 42, 43, 50, 51, 52, 53
        a.e(f"s_lshr_b32 s{S_RB}, s{S_WG}, 3")
        a.e(f"s_and_b32 s{S_CB}, s{S_WG}, 7")
        a.e(f"s_lshr_b32 s{S_KG}, s{S_WAVE}, 2")
        a.e(f"s_and_b32 s{S_TT}, s{S_WAVE}, 1")
        a.e(f"s_bfe_u32 s{S_FT}, s{S_WAVE}, 0x10001")
        self.wtile64_dma(P_WOUT, 917504, 896, S_CB, 0)
        a.e(f"s_lshl_b32 s{S_F0}, s{S_CB}, 6")
        a.e(f"s_lshl_b32 s46, s{S_FT}, 5")
        a.e(f"s_add_u32 s{S_F0}, s{S_F0}, s46")
        a.e(f"s_lshl_b32 s46, s{S_KG}, 4")
        a.e(f"s_add_u32 s{S_F0}, s{S_F0}, s46")
        VXR, VGB = 240, 244
        a.e(f"s_lshl_b32 s46, s{S_RB}, 1")
        a.e(f"s_add_u32 s46, s46, s{S_TT}")
        a.e("s_lshl_b32 s46, s46, 5")
        a.e(f"s_lshr_b32 s47, s{S_F0}, 4")
        a.e("s_add_u32 s46, s46, s47")
        a.e("s_lshl_b32 s46, s46, 10")
        a.e(f"s_add_u32 s46, s46, {WS_X1F}")
        a.e("v_lshlrev_b32 v12, 4, v1")
        a.e("v_add_u32 v12, s46, v12")
        a.e(f"global_load_dwordx4 {vr(VXR,4)}, v12, {sp(P_WS)} sc1")
        self.feat_vec_load(VGB, 5, S_F0)
        a.e(f"s_lshl_b32 s46, s{S_RB}, 8")
        a.e(f"s_add_u32 s46, s46, {WS_CNT + C5*256}")
        self.wait_cnt(46, 7)
        self.stamp()
        a.e("s_waitcnt vmcnt(0)")
        a.e("s_barrier")
        self.small_gemm(56, WS_YF, S_RB, S_KG, S_TT, S_FT, 0, VT=16)
        self.stamp()
        ACC = 192
        self.ksplit_reduce(ACC, 1, S_KG, 114688, tmp=8)
        for k in range(4):
            a.e(f"v_lshlrev_b32 v{16+2*k}, 16, v{VXR+k}")
            a.e(f"v_and_b32 v{17+2*k}, 0xffff0000, v{VXR+k}")
        for r in range(8):
            a.e(f"v_fma_f32 v{ACC+r}, v{ACC+r}, v{VGB+r}, v{16+r}")
        for k in range(4):
            a.e(f"v_cvt_pk_bf16_f32 v{8+k}, v{ACC+2*k}, v{ACC+2*k+1}")
        a.e("s_nop 1")
        a.e("v_permlane32_swap_b32 v8, v10")
        a.e("v_permlane32_swap_b32 v9, v11")
        a.e(f"s_lshl_b32 s46, s{S_RB}, 16")
        a.e(f"s_lshl_b32 s47, s{S_TT}, 15")
        a.e("s_add_u32 s46, s46, s47")
        a.e(f"s_lshl_b32 s47, s{S_F0}, 1")
        a.e("s_add_u32 s46, s46, s47")
        a.e("v_lshlrev_b32 v12, 10, v2")
        a.e("v_lshl_add_u32 v12, v3, 4, v12")
        a.e("v_add_u32 v12, s46, v12")
        a.e(f"global_store_dwordx4 v12, v[8:11], {sp(P_OUT)}")
        self.stamp()

    def build(self):
        a = self.a
        self.prologue()
        self.p01()
        done = self.finish_phase(1)
        for n, fn in ((2, "p2"), (3, "p3"), (4, "p4"), (5, "p5"), (6, "p6")):
            if done:
                break
            getattr(self, fn)()
            done = self.finish_phase(n)
        a.label("L_end")
        self.flush_stamps()
        a.label("L_exit")
        a.e("s_endpgm")
        a.label("L_code_end")
        return self.text()

    def text(self):
        hdr = open("cdna_kernels/" + NAME + ".s.ref").read().split("\n")
        head = []
        for ln in hdr:
            if ln.startswith("; @launch"):
                head.append("; @launch grid=(256,1,1) block=(512,1,1) lds=163840")
                break
            head.append(ln)
        body = "\n".join(self.a.lines)
        npf = self.o.get("codepf", 1)
        pf = []
        for i in range(npf):
            pf.append("    v_min_u32 v5, (L_code_end - L_pc - 16), v4")
            pf.append("    global_load_dwordx4 v[248:251], v5, s[4:5]")
            pf.append("    v_add_u32 v4, 0x8000, v4")
        body = body.replace("@CODEPF@", "\n".join(pf))
        out = "\n".join(head) + f"""
.amdgcn_target "amdgcn-amd-amdhsa--gfx950"
.text
.globl {NAME}_kernel
.p2align 8
.type {NAME}_kernel,@function
{NAME}_kernel:
{body}
.section .rodata,"a"
.p2align 6
.amdhsa_kernel {NAME}_kernel
  .amdhsa_next_free_vgpr 256
  .amdhsa_next_free_sgpr 102
  .amdhsa_accum_offset 256
  .amdhsa_group_segment_fixed_size 0
  .amdhsa_kernarg_size 104
  .amdhsa_user_sgpr_count 2
  .amdhsa_user_sgpr_kernarg_segment_ptr 1
  .amdhsa_system_sgpr_workgroup_id_x 1
.end_amdhsa_kernel
"""
        return out


if __name__ == "__main__":
    import argparse
    ap = argparse.ArgumentParser()
    ap.add_argument("--stop", type=int, default=99)
    ap.add_argument("--prof", action="store_true")
    ap.add_argument("--cyc", action="store_true")
    ap.add_argument("--opt", action="append", default=[])
    ap.add_argument("-o", default="cdna_kernels/" + NAME + ".s")
    args = ap.parse_args()
    opts = {}
    if args.cyc:
        opts['clk'] = 's_memtime'
    for kv in args.opt:
        k, v = kv.split("=")
        opts[k] = int(v)
    g = Gen(stop_after=args.stop, prof=args.prof, opts=opts)
    open(args.o, "w").write(g.build())
    print("wrote", args.o)
```
